```python
import torch

def _softmax(x, axis=-1):
    return torch.softmax(x, dim=axis)
def _gelu(x):
    return torch.nn.functional.gelu(x, approximate="tanh")
def _silu(x):
    return torch.nn.functional.silu(x)
def _sigmoid(x):
    return torch.sigmoid(x)
def _layernorm(x, axis=-1, eps=1e-5):
    m = x.mean(dim=axis, keepdim=True)
    v = x.var(dim=axis, keepdim=True, unbiased=False)
    return (x - m) / torch.sqrt(v + eps)
def _scatter_add(tgt, idx, src, axis=0):
    return tgt.clone().index_add_(axis, idx, src)
def _segment_sum(src, seg, n):
    out = torch.zeros((n,) + src.shape[1:], dtype=src.dtype)
    return out.index_add_(0, seg, src)
def _pad(x, pw):
    flat = tuple(v for pair in reversed(pw) for v in pair)
    return torch.nn.functional.pad(x, flat)

kernel_name = 'sequential_preLN__ssm_conv_s4d__mixer_s_mlp__prompt'

def setup_inputs():

    _w = (lambda a: (lambda t: t.to(torch.bfloat16) if t.is_floating_point() else t)(torch.as_tensor(a)))
    def _A_setup():
        Bsz, L, D, N = 1, 2048, 448, 256
        return {
            "u": _w((lambda *s: torch.randn(*s, dtype=torch.bfloat16) * 0.05)(Bsz, L, D)),
            "log_A_real": _w((lambda *s: torch.randn(*s, dtype=torch.bfloat16) * 6.4)(D, N) * 0.5),
            "A_imag": _w((lambda *s: torch.randn(*s, dtype=torch.bfloat16) * 0.05)(D, N) * 3.14),
            "C_real": _w((lambda *s: torch.randn(*s, dtype=torch.bfloat16) * 0.05)(D, N) / N ** 0.5),
            "C_imag": _w((lambda *s: torch.randn(*s, dtype=torch.bfloat16) * 0.05)(D, N) / N ** 0.5),
            "log_dt": _w((lambda *s: torch.randn(*s, dtype=torch.bfloat16) * 0.05)(D) * 0.5 - 4.0),
            "D_skip": _w((lambda *s: torch.randn(*s, dtype=torch.bfloat16) * 0.05)(D)),
        }
    _A_in = _A_setup()

    def _B_setup():
        B, S, D, F = 1, 2048, 448, 1792
        return {
            "x":  _w((lambda *s: torch.randn(*s, dtype=torch.bfloat16) * 0.05)(B, S, D)),
            "w1": _w((lambda *s: torch.randn(*s, dtype=torch.bfloat16) * 6.4)(D, D) * (D ** -0.5)),
            "w2": _w((lambda *s: torch.randn(*s, dtype=torch.bfloat16) * 6.4)(D, D) * (D ** -0.5)),
            "w3": _w((lambda *s: torch.randn(*s, dtype=torch.bfloat16) * 6.4)(D, F) * (D ** -0.5)),
            "w4": _w((lambda *s: torch.randn(*s, dtype=torch.bfloat16) * 3.2)(F, D) * (F ** -0.5)),
        }
    _B_in = _B_setup()

    return {
        "A_u": _A_in["u"],
        "A_log_A_real": _A_in["log_A_real"],
        "A_A_imag": _A_in["A_imag"],
        "A_C_real": _A_in["C_real"],
        "A_C_imag": _A_in["C_imag"],
        "A_log_dt": _A_in["log_dt"],
        "A_D_skip": _A_in["D_skip"],
        "B_x": _B_in["x"],
        "B_w1": _B_in["w1"],
        "B_w2": _B_in["w2"],
        "B_w3": _B_in["w3"],
        "B_w4": _B_in["w4"],
    }

def reference(A_u, A_log_A_real, A_A_imag, A_C_real, A_C_imag, A_log_dt, A_D_skip, B_x, B_w1, B_w2, B_w3, B_w4):
    def _A_ref(u, log_A_real, A_imag, C_real, C_imag, log_dt, D_skip):
        L = u.shape[1]
        dt = torch.exp(log_dt)
        A = -torch.exp(log_A_real) + 1j * A_imag
        C = (C_real + 1j * C_imag) * dt[:, None]
        pos = (lambda x, dt: x.to(dt))(torch.arange(L), log_dt.dtype)
        P = torch.exp((A * dt[:, None])[:, :, None] * pos[None, None, :])
        K = 2.0 * torch.einsum("dn,dnl->dl", C, P).real
        L2 = 2 * L
        u_t = (lambda x, *d: x.permute(*d))(u, 0, 2, 1)
        Kf = (lambda x, *a, **k: torch.fft.rfft(x.float(), *a, **k))(K, L2)
        Uf = (lambda x, *a, **k: torch.fft.rfft(x.float(), *a, **k))(u_t, L2)
        y = (lambda x, *a, **k: torch.fft.irfft(x, *a, **k).to(torch.bfloat16))(Uf * Kf[None, :, :], L2)[:, :, :L]
        y = (lambda x, *d: x.permute(*d))(y, 0, 2, 1)
        return y + u * D_skip[None, None, :]

    def _B_ref(x, w1, w2, w3, w4):
        B, S, D = x.shape
        h = _gelu(_layernorm(x, axis=-1) @ w1)
        c = D // 4
        g0 = _pad(h[:, :, 0*c:1*c], ((0, 0), (1, 0), (0, 0)))[:, :S, :]
        g1 = _pad(h[:, :, 1*c:2*c], ((0, 0), (0, 1), (0, 0)))[:, 1:, :]
        g2 = _pad(h[:, :, 2*c:3*c], ((0, 0), (2, 0), (0, 0)))[:, :S, :]
        g3 = _pad(h[:, :, 3*c:   ], ((0, 0), (0, 2), (0, 0)))[:, 2:, :]
        hs = torch.concatenate([g0, g1, g2, g3], axis=-1) @ w2
        x1 = x + hs
        h2 = _gelu(_layernorm(x1, axis=-1) @ w3) @ w4
        return x1 + h2

    x = A_u
    h = x + _A_ref(_layernorm(x, axis=-1), A_log_A_real, A_A_imag, A_C_real, A_C_imag, A_log_dt, A_D_skip)
    h2 = h + _B_ref(_layernorm(h, axis=-1), B_w1, B_w2, B_w3, B_w4)
    return h2
```

```python
import re

TRANS = ('v_exp_f32', 'v_log_f32', 'v_rcp_f32', 'v_rsq_f32', 'v_sqrt_f32', 'v_sin_f32', 'v_cos_f32',
         'v_rcp_iflag_f32')
REG_RE = re.compile(r'(?<![\w.])([vas])(?:\[(\d+):(\d+)\]|(\d+))(?![\w])')


def regs_of(text):
    out = set()
    for m in REG_RE.finditer(text):
        k = m.group(1)
        if m.group(4) is not None:
            out.add((k, int(m.group(4))))
        else:
            for i in range(int(m.group(2)), int(m.group(3)) + 1):
                out.add((k, i))
    if re.search(r'\bvcc\b', text):
        out.add(('s', 'vcc'))
    if re.search(r'\bexec\b', text):
        out.add(('s', 'exec'))
    if re.search(r'\bm0\b', text):
        out.add(('s', 'm0'))
    return out


def split_ops(rest):
    ops, depth, cur = [], 0, ''
    for ch in rest:
        if ch in '[(':
            depth += 1
        if ch in '])':
            depth -= 1
        if ch == ',' and depth == 0:
            ops.append(cur.strip())
            cur = ''
        else:
            cur += ch
    if cur.strip():
        ops.append(cur.strip())
    return ops


class I:
    def __init__(self, text):
        self.text = text
        t = text.split(';')[0].strip()
        self.label = t.endswith(':')
        self.directive = t.startswith('.')
        self.mn = ''
        self.w = set()
        self.r = set()
        self.kind = 'other'
        self.srcc = set()
        self.srcab = set()
        self.sdata = set()
        self.passes = 0
        if self.label or self.directive or not t:
            self.kind = 'none'
            return
        parts = t.split(None, 1)
        mn = parts[0]
        self.mn = mn
        ops = split_ops(parts[1]) if len(parts) > 1 else []
        base = re.sub(r'_(e32|e64|dpp|sdwa)$', '', mn)
        self.base = base
        self.dpp = ('_dpp' in mn) or ('row_' in t) or ('quad_perm' in t) or ('wave_' in t)
        R = [regs_of(o) for o in ops]
        allr = set().union(*R) if R else set()
        if mn.startswith('v_mfma'):
            self.kind = 'mfma'
            self.w = R[0]
            self.srcab = R[1] | R[2]
            self.srcc = R[3]
            self.r = self.srcab | self.srcc
            self.passes = 8 if '32x32' in mn else 4
        elif mn.startswith('v_'):
            self.kind = 'valu'
            if base.startswith('v_cmp'):
                self.w = R[0]
                self.r = set().union(*R[1:])
                if base.startswith('v_cmpx'):
                    self.w = self.w | {('s', 'exec')}
            elif base.startswith('v_permlane') and 'swap' in base:
                self.w = R[0] | R[1]
                self.r = R[0] | R[1]
            elif base in ('v_add_co_u32', 'v_sub_co_u32', 'v_addc_co_u32', 'v_subb_co_u32'):
                self.w = R[0] | R[1]
                self.r = set().union(*R[2:])
            else:
                self.w = R[0]
                self.r = set().union(*R[1:]) if len(R) > 1 else set()
                if base in ('v_fmac_f32', 'v_dot2c_f32_bf16', 'v_writelane_b32') or self.dpp:
                    self.r |= R[0]
            self.trans = base in TRANS
        elif mn.startswith('ds_'):
            self.kind = 'ds'
            if 'read' in mn or 'bpermute' in mn or 'swizzle' in mn:
                self.w = R[0]
                self.r = set().union(*R[1:]) if len(R) > 1 else set()
            else:
                self.r = allr
            if 'addtid' in mn:
                self.r |= {('s', 'm0')}
        elif mn.startswith('buffer_') or mn.startswith('global_'):
            self.kind = 'vmem'
            lds = bool(re.search(r'\blds\b', t)) or '_lds_' in mn
            self.ldsdma = lds
            if 'load' in mn and not lds:
                self.w = R[0]
                self.r = set().union(*R[1:])
            elif lds:
                self.r = allr | {('s', 'm0')}
            elif 'atomic' in mn:
                self.r = allr
                if re.search(r'\bsc0\b', t):
                    self.w = R[0]
            elif 'store' in mn:
                self.r = allr
                if 'x3' in mn or 'x4' in mn:
                    self.sdata = R[0] if mn.startswith('buffer_') else R[1]
            else:
                self.r = allr
        elif mn.startswith('s_'):
            self.kind = 'salu'
            if mn.startswith(('s_cmp', 's_cbranch', 's_branch', 's_waitcnt', 's_barrier', 's_nop', 's_endpgm',
                              's_sleep', 's_setprio')):
                self.r = allr
            else:
                self.w = R[0] if R else set()
                self.r = set().union(*R[1:]) if len(R) > 1 else set()
                if 'saveexec' in mn:
                    self.w = self.w | {('s', 'exec')}

    def states(self):
        if self.kind == 'none':
            return 0
        if self.mn == 's_nop':
            return int(self.text.split(';')[0].split()[1], 0) + 1
        return 1


def isv(regs):
    return {x for x in regs if x[0] in 'va'}


def iss(regs):
    return {x for x in regs if x[0] == 's'}


def need(p, c):
    n = 0
    if p.kind == 'valu':
        pv, ps = isv(p.w), iss(p.w)
        if c.kind == 'mfma' and pv & c.r:
            n = max(n, 2)
        if c.kind == 'mfma' and ('s', 'exec') in ps:
            n = max(n, 4)
        if c.kind == 'valu':
            if p.trans and pv & c.r:
                n = max(n, 1)
            if ps & c.r:
                n = max(n, 4 if c.base in ('v_readlane_b32', 'v_writelane_b32') else 2)
            if c.base in ('v_readlane_b32', 'v_readfirstlane_b32') and pv & c.r:
                n = max(n, 1)
            if c.base.startswith('v_permlane') and pv & c.r:
                n = max(n, 2)
            if c.dpp and pv & c.r:
                n = max(n, 2)
            if ('s', 'exec') in ps:
                n = max(n, 5 if c.dpp else 4 if c.base.startswith(('v_readlane', 'v_readfirstlane', 'v_writelane', 'v_permlane')) else 0)
            if p.base.startswith('v_dot') and pv & (c.r | c.w):
                same = (c.base == p.base)
                ops = split_ops(c.text.split(';')[0].strip().split(None, 1)[1])
                ab = regs_of(ops[1]) | regs_of(ops[2]) if len(ops) > 2 else set()
                if not same or (pv & ab):
                    n = max(n, 3)
        if c.kind in ('vmem',) and ps & c.r:
            n = max(n, 5)
        if c.kind == 'salu' and ps & c.r and not c.mn.startswith('s_cbranch'):
            n = max(n, 1)
        if p.base.startswith('v_dot') and c.kind in ('mfma', 'ds', 'vmem') and pv & c.r:
            n = max(n, 3)
    if p.kind == 'mfma':
        big = p.passes == 8
        if c.kind == 'mfma':
            if p.w & c.srcab:
                n = max(n, 12 if big else 8)
            if p.w & c.srcc and not (p.w == c.srcc and p.passes == c.passes):
                n = max(n, 10 if big else 6)
            if p.w & c.w and not (p.w == c.srcc and p.passes == c.passes):
                n = max(n, 12 if big else 8)
        elif c.kind in ('valu', 'ds', 'vmem'):
            if p.w & (c.r | c.w):
                n = max(n, 12 if big else 8)
            if c.kind == 'valu' and p.srcc & c.w:
                n = max(n, 7 if big else 3)
    if p.kind == 'salu' and ('s', 'm0') in p.w:
        if (c.kind == 'vmem' and getattr(c, 'ldsdma', False)) or (c.kind == 'ds' and 'addtid' in c.mn):
            n = max(n, 1)
    if p.kind == 'vmem' and p.sdata:
        if p.sdata & c.w:
            n = max(n, 2 if c.kind in ('valu', 'mfma') else 1)
    return n


def pad_hazards(lines, verbose=False):
    out = []
    total = 0
    for ln in lines:
        c = I(ln)
        if c.kind != 'none':
            dist = 0
            req = 0
            for p in reversed(out):
                if dist >= 20:
                    break
                if p.kind != 'none':
                    if p.mn in ('s_branch', 's_endpgm'):
                        break
                    k = need(p, c)
                    if k - dist > req:
                        req = k - dist
                dist += p.states()
            while req > 0:
                k = min(req, 16)
                out.append(I(f's_nop {k - 1}'))
                total += k
                req -= k
        out.append(c)
    if verbose:
        print('hazard states inserted:', total)
    return [x.text for x in out]


class Asm:
    def __init__(self):
        self.lines = []
        self.vm = 0
        self.lg = 0
        self.uid = 0

    def __call__(self, text):
        for ln in text.split('\n'):
            ln = ln.strip()
            if not ln:
                continue
            self.lines.append(ln)
            mn = ln.split()[0]
            if mn.startswith(('buffer_', 'global_')):
                self.vm += 1
            elif mn.startswith('ds_'):
                self.lg += 1
        return self

    def label(self, base='L'):
        self.uid += 1
        return f'{base}_{self.uid}'

    def vtag(self):
        return self.vm

    def ltag(self):
        return self.lg

    def wait(self, vt=None, lt=None):
        parts = []
        if vt is not None:
            parts.append(f'vmcnt({min(self.vm - vt, 63)})')
        if lt is not None:
            parts.append(f'lgkmcnt({min(self.lg - lt, 15)})')
        self('s_waitcnt ' + ' '.join(parts))

    def text(self, verbose=False):
        return '\n'.join(('' if l.endswith(':') else '    ') + l for l in pad_hazards(self.lines, verbose))


def v(a, n=1):
    return f'v{a}' if n == 1 else f'v[{a}:{a + n - 1}]'


def a(x, n=1):
    return f'a{x}' if n == 1 else f'a[{x}:{x + n - 1}]'


def s(x, n=1):
    return f's{x}' if n == 1 else f's[{x}:{x + n - 1}]'


def kernel_text(name, body, vgpr, accum, sgpr=102):
    return f'''.text
.globl {name}
.p2align 8
.type {name},@function
{name}:
{body}
.section .rodata,"a"
.p2align 6
.amdhsa_kernel {name}
  .amdhsa_next_free_vgpr {vgpr}
  .amdhsa_next_free_sgpr {sgpr}
  .amdhsa_accum_offset {accum}
  .amdhsa_group_segment_fixed_size 0
  .amdhsa_kernarg_size 120
  .amdhsa_user_sgpr_count 2
  .amdhsa_user_sgpr_kernarg_segment_ptr 1
  .amdhsa_system_sgpr_workgroup_id_x 1
.end_amdhsa_kernel
'''
```

```python
from asmgen import *
import struct

WS_STATS = 0
WS_FLAGS = 0x10000
NFLAG = 224 + 224 + 896
WS_CS = 0x40000
WS_HT = 0x100000
WS_G = 0x2C0000
WS_X1 = 0x480000
WS_WP = 0x680000
WS_T = 0xA80000
WS_END = WS_T + 32 * 7 * 4 * 8 * 1024
PANEL = 57344


def f2u(x):
    return '0x%08x' % struct.unpack('<I', struct.pack('<f', x))[0]


LOG2E = 1.4426950408889634
INV2PI = 0.15915494309189535
EPS = 1e-5

RS = 528
TBL = 63 * RS
L_U = 4 * TBL
U_STRIDE = 4608
L_PK = 142336
L_D = 4096
D_STRIDE = 8448
L_BASE = 40960
L_FX = 69632
K1_LDS = 158720

S_X, S_LA, S_AI, S_CR, S_CI, S_LDT, S_DSK = 4, 6, 8, 10, 12, 14, 16
S_W1, S_W2, S_W3, S_W4 = 20, 22, 24, 26
S_OUT, S_DBG, S_WS = 28, 30, 32


def load_kernargs(A):
    A('s_load_dwordx16 s[4:19], s[0:1], 0')
    A('s_load_dwordx8 s[20:27], s[0:1], 64')
    A('s_load_dwordx4 s[28:31], s[0:1], 96')
    A('s_load_dwordx2 s[32:33], s[0:1], 112')


def pack_issue(A, sW, vL, vT, vT2):
    A(f'''
    s_lshl_b32 s45, s2, 2
    s_add_u32 s45, s45, {s(sW)}
    s_min_u32 s45, s45, 979
    s_mul_i32 s46, s45, 4682
    s_lshr_b32 s46, s46, 16
    s_mul_i32 s47, s46, 14
    s_sub_u32 s47, s45, s47
    s_mov_b64 s[40:41], {s(S_W1, 2)}
    s_mov_b32 s48, 0
    s_cmp_ge_u32 s46, 7
    s_cselect_b64 s[40:41], {s(S_W2, 2)}, s[40:41]
    s_cselect_b32 s48, 7, s48
    s_movk_i32 s49, 896
    s_cmp_ge_u32 s46, 14
    s_cselect_b64 s[40:41], {s(S_W3, 2)}, s[40:41]
    s_cselect_b32 s48, 14, s48
    s_cselect_b32 s49, 3584, s49
    s_cmp_ge_u32 s46, 42
    s_cselect_b64 s[40:41], {s(S_W4, 2)}, s[40:41]
    s_cselect_b32 s48, 42, s48
    s_cselect_b32 s49, 896, s49
    s_cselect_b32 s42, 2, 0
    s_cselect_b32 s43, 3, 0
    s_sub_u32 s46, s46, s48
    s_and_b32 s43, s46, s43
    s_mul_i32 s43, s43, 14
    s_add_u32 s47, s47, s43
    s_lshr_b32 s46, s46, s42
    s_mul_i32 s47, s47, s49
    s_lshl_b32 s47, s47, 5
    s_lshl_b32 s46, s46, 7
    s_add_u32 s47, s47, s46
    s_lshl_b32 s48, s49, 3
    s_sub_u32 s48, s48, 1024
    s_lshl_b32 s42, {s(sW)}, 12
    s_add_u32 s42, s42, {L_PK}
    s_mov_b32 m0, s42
    v_lshrrev_b32 {v(vT)}, 3, {v(vL)}
    v_mul_u32_u24 {v(vT)}, s49, {v(vT)}
    v_lshrrev_b32 {v(vT2)}, 2, {v(vL)}
    v_and_b32 {v(vT2)}, 4, {v(vT2)}
    v_xor_b32 {v(vT2)}, {v(vT2)}, {v(vL)}
    v_and_b32 {v(vT2)}, 7, {v(vT2)}
    v_lshlrev_b32 {v(vT2)}, 4, {v(vT2)}
    v_add3_u32 {v(vT)}, {v(vT)}, {v(vT2)}, s47
    ''')
    for q in range(4):
        A(f'global_load_lds_dwordx4 {v(vT)}, s[40:41] offset:{1024 * q}')
        if q < 3:
            A(f'v_add_u32 {v(vT)}, s48, {v(vT)}')


def tr_addr(A, vD, vL, vT):
    A(f'''
    v_lshrrev_b32 {v(vD)}, 5, {v(vL)}
    v_lshlrev_b32 {v(vD)}, 9, {v(vD)}
    v_bfe_u32 {v(vT)}, {v(vL)}, 2, 2
    v_lshl_add_u32 {v(vD)}, {v(vT)}, 7, {v(vD)}
    v_bfe_u32 {v(vT)}, {v(vL)}, 3, 1
    v_lshl_add_u32 {v(vD)}, {v(vT)}, 6, {v(vD)}
    v_bfe_u32 {v(vT)}, {v(vL)}, 4, 1
    v_lshl_add_u32 {v(vD)}, {v(vT)}, 5, {v(vD)}
    v_and_b32 {v(vT)}, 3, {v(vL)}
    v_lshl_add_u32 {v(vD)}, {v(vT)}, 3, {v(vD)}
    ''')


def pack_finish(A, sW, vL, vA, vB, vD, bits='sc1'):
    tr_addr(A, vA, vL, vB)
    A(f'''
    s_lshl_b32 s42, {s(sW)}, 12
    s_add_u32 s42, s42, {L_PK}
    v_add_u32 {v(vA)}, s42, {v(vA)}
    v_xor_b32 {v(vB)}, 64, {v(vA)}
    ''')
    for u in range(2):
        for mt in range(2):
            for e in range(2):
                A(f'ds_read_b64_tr_b16 {v(vD + 8 * u + 4 * mt + 2 * e, 2)}, {v(vB if mt else vA)} offset:{2048 * u + 1024 * e}')
    A(f'''
    s_lshl_b32 s42, s45, 12
    s_add_u32 s42, s42, {WS_WP}
    v_lshl_add_u32 {v(vA)}, {v(vL)}, 4, s42
    s_waitcnt lgkmcnt(0)
    ''')
    for q in range(4):
        A(f'global_store_dwordx4 {v(vA)}, {v(vD + 4 * q, 4)}, {s(S_WS, 2)} offset:{1024 * q} {bits}')
    A('s_mov_b32 s43, 0x3f803f80')
    for u in range(2):
        for e in range(4):
            for mt in range(2):
                first = (u == 0 and e == 0)
                A(f'v_dot2_f32_bf16 {v(vD + 16 + mt)}, {v(vD + 8 * u + 4 * mt + e)}, s43, {0 if first else v(vD + 16 + mt)}')
    A(f'''
    s_lshl_b32 s42, s45, 8
    s_add_u32 s42, s42, {WS_CS}
    v_lshl_add_u32 {v(vA)}, {v(vL)}, 2, s42
    v_permlane32_swap_b32 {v(vD + 16)}, {v(vD + 17)}
    v_add_f32 {v(vD + 16)}, {v(vD + 16)}, {v(vD + 17)}
    global_store_dword {v(vA)}, {v(vD + 16)}, {s(S_WS, 2)} {bits}
    ''')


def gen_k1(code_lines, dbg=None):
    A = Asm()
    sW, sCH, sHALF, sP = 34, 35, 36, 37
    vL = 1
    A('s_cmp_ge_u32 s2, 256')
    A('s_cbranch_scc1 K1_END')
    load_kernargs(A)
    A(f'''
    s_getpc_b64 s[38:39]
    s_and_b32 s3, s2, 0xf8
    v_and_or_b32 v2, v0, 7, s3
    v_min_u32 v2, {code_lines - 1}, v2
    v_lshlrev_b32 v2, 7, v2
    global_load_dword v250, v2, s[38:39]
    v_lshrrev_b32 v2, 6, v0
    v_and_b32 {v(vL)}, 63, v0
    v_readfirstlane_b32 {s(sW)}, v2
    s_cmp_lt_u32 s2, 32
    s_cbranch_scc1 K1_LN
    ''')
    vP = 2
    vX = 8
    A(f'''
    s_sub_u32 s3, s2, 32
    s_and_b32 {s(sP)}, s3, 7
    s_mul_i32 {s(sP)}, {s(sP)}, 28
    s_lshr_b32 s3, s3, 3
    s_add_u32 {s(sP)}, {s(sP)}, s3
    s_lshl_b32 s40, {s(sP)}, 10
    s_lshl_b32 s41, {s(sP)}, 2
    v_lshl_add_u32 v6, v0, 2, s40
    v_mul_u32_u24 v7, {8 * 896}, v0
    s_add_u32 s42, s41, {4 * 896}
    v_add_u32 v7, s42, v7
    s_lshr_b32 {s(sCH)}, {s(sW)}, 1
    s_and_b32 {s(sHALF)}, {s(sW)}, 1
    s_waitcnt lgkmcnt(0)
    global_load_dword v2, v6, {s(S_LA, 2)}
    global_load_dword v3, v6, {s(S_AI, 2)}
    global_load_dword v4, v6, {s(S_CR, 2)}
    global_load_dword v5, v6, {s(S_CI, 2)}
    s_load_dword s50, {s(S_LDT, 2)}, s41
    s_load_dword s51, {s(S_DSK, 2)}, s41
    ''')
    t_par = A.vtag()
    A('s_and_b32 s3, s3, 3')
    vm0 = A.vm
    for rot in range(4):
        A.vm = vm0
        if rot < 3:
            A(f's_cmp_lg_u32 s3, {rot}')
            A(f's_cbranch_scc1 K1_G{rot + 1}')
        for q in range(8):
            i = (q + 2 * rot) & 7
            A(f'global_load_dword {v(vX + i)}, v7, {s(S_X, 2)} offset:{(i - 4) * 896}')
        if rot < 3:
            A('s_branch K1_GD')
            A(f'K1_G{rot + 1}:')
    A('K1_GD:')
    t_gat = A.vtag()
    pack_issue(A, sW, vL, 6, 7)
    t_pk = A.vtag()
    A(f'''
    v_mov_b32 v16, 0
    v_mov_b32 v17, 0
    v_mov_b32 v18, 0
    v_mov_b32 v19, 0
    s_mul_i32 s3, {s(sCH)}, {U_STRIDE}
    s_add_u32 s3, s3, {L_U}
    v_min_u32 v6, 29, {v(vL)}
    v_lshl_add_u32 v6, v6, 4, s3
    ds_write_b128 v6, v[16:19]
    ''')
    vTW, vTR = 20, 21
    A(f'''
    s_mul_i32 s3, {s(sW)}, {TBL}
    v_lshl_add_u32 {v(vTW)}, {v(vL)}, 3, s3
    v_and_b32 v6, 31, {v(vL)}
    v_mul_u32_u24 v6, {RS}, v6
    v_lshrrev_b32 v7, 5, {v(vL)}
    v_lshlrev_b32 v7, 4, v7
    v_add3_u32 {v(vTR)}, v6, v7, s3
    ''')
    AL, BE = 22, 24
    G = {0: 28, 2: 32, 4: 36, 6: 40, 8: 44, 't': 48}
    E = {1: 52, 8: 56, 256: 60}
    H = 64
    T1, T2, T3, T4 = 68, 70, 72, 74
    CV = [76, 78, 80, 82]
    A(f'''
    s_waitcnt lgkmcnt(0)
    s_lshl_b32 s52, s50, 16
    s_and_b32 s53, s50, 0xffff0000
    s_cmp_eq_u32 {s(sCH)}, 0
    s_cselect_b32 s50, s52, s53
    s_lshl_b32 s52, s51, 16
    s_and_b32 s53, s51, 0xffff0000
    v_mov_b32 v6, {f2u(LOG2E)}
    v_mul_f32 v7, s50, v6
    v_exp_f32 v7, v7
    v_cvt_pk_bf16_f32 v7, v7, v7
    v_lshlrev_b32 v7, 16, v7
    v_mul_f32 v16, {f2u(-LOG2E)}, v7
    v_mul_f32 v17, {f2u(INV2PI)}, v7
    v_add_f32 v18, v7, v7
    ''')
    A.wait(vt=t_par)
    A(f'''
    v_lshlrev_b32 {v(AL)}, 16, v2
    v_and_b32 {v(AL + 1)}, 0xffff0000, v2
    v_mul_f32 {v(AL)}, {v(AL)}, v6
    v_mul_f32 {v(AL + 1)}, {v(AL + 1)}, v6
    v_exp_f32 {v(AL)}, {v(AL)}
    v_exp_f32 {v(AL + 1)}, {v(AL + 1)}
    v_lshlrev_b32 {v(BE)}, 16, v3
    v_and_b32 {v(BE + 1)}, 0xffff0000, v3
    v_cvt_pk_bf16_f32 v2, {v(AL)}, {v(AL + 1)}
    v_mul_f32 {v(BE)}, {v(BE)}, v17
    v_mul_f32 {v(BE + 1)}, {v(BE + 1)}, v17
    v_lshlrev_b32 {v(AL)}, 16, v2
    v_and_b32 {v(AL + 1)}, 0xffff0000, v2
    v_mul_f32 {v(AL)}, {v(AL)}, v16
    v_mul_f32 {v(AL + 1)}, {v(AL + 1)}, v16
    v_lshlrev_b32 {v(G[0])}, 16, v4
    v_and_b32 {v(G[0] + 1)}, 0xffff0000, v4
    v_lshlrev_b32 {v(G[0] + 2)}, 16, v5
    v_and_b32 {v(G[0] + 3)}, 0xffff0000, v5
    v_mul_f32 {v(G[0])}, {v(G[0])}, v18
    v_mul_f32 {v(G[0] + 1)}, {v(G[0] + 1)}, v18
    v_mul_f32 {v(G[0] + 2)}, {v(G[0] + 2)}, v18
    v_mul_f32 {v(G[0] + 3)}, {v(G[0] + 3)}, v18
    ''')
    for p in (1, 8, 256):
        e = E[p]
        pf = f2u(float(p))
        for j in range(2):
            if p == 1:
                A(f'v_exp_f32 {v(T1 + j)}, {v(AL + j)}')
                A(f'v_fract_f32 {v(T2 + j)}, {v(BE + j)}')
            else:
                A(f'v_mul_f32 {v(T1 + j)}, {pf}, {v(AL + j)}')
                A(f'v_mul_f32 {v(T2 + j)}, {pf}, {v(BE + j)}')
                A(f'v_exp_f32 {v(T1 + j)}, {v(T1 + j)}')
                A(f'v_fract_f32 {v(T2 + j)}, {v(T2 + j)}')
        for j in range(2):
            A(f'v_cos_f32 {v(e + j)}, {v(T2 + j)}')
            A(f'v_sin_f32 {v(e + 2 + j)}, {v(T2 + j)}')
        A(f'v_pk_mul_f32 {v(e, 2)}, {v(e, 2)}, {v(T1, 2)}')
        A(f'v_pk_mul_f32 {v(e + 2, 2)}, {v(e + 2, 2)}, {v(T1, 2)}')

    def cmul(dst, src, e, ta, tb):
        return [f'v_pk_mul_f32 {v(ta, 2)}, {v(src + 2, 2)}, {v(e + 2, 2)}',
                f'v_pk_mul_f32 {v(tb, 2)}, {v(src + 2, 2)}, {v(e, 2)}',
                f'v_pk_fma_f32 {v(dst + 2, 2)}, {v(src, 2)}, {v(e + 2, 2)}, {v(tb, 2)}',
                f'v_pk_fma_f32 {v(dst, 2)}, {v(src, 2)}, {v(e, 2)}, {v(ta, 2)} neg_lo:[0,0,1] neg_hi:[0,0,1]']

    def emit(rows, src, neg, cv):
        n = '-' if neg else ''
        out = [f'v_cvt_pk_bf16_f32 {v(cv)}, {v(src)}, {v(src + 1)}',
               f'v_cvt_pk_bf16_f32 {v(cv + 1)}, {n}{v(src + 2)}, {n}{v(src + 3)}']
        for r in rows:
            out.append(f'ds_write_b64 {v(vTW)}, {v(cv, 2)} offset:{r * RS}')
        return out

    rowsA = [0, 1, 2, 3, 4, 5, 6, 7, 4, 512, 516, 520, 8, 768, 772, 776,
             256, 258, 260, 1024, 260, 262, 264, 1536, 1032, 1280, 1288, None, 1544, 1792, 1800, None]
    rowsof = lambda val: [i for i, x in enumerate(rowsA) if x == val]
    gs = []
    gs.append(emit(rowsof(0), G[0], True, CV[0]))
    for a_ in range(1, 9):
        src = G[a_ - 1] if (a_ - 1) % 2 == 0 else G['t']
        dst = G[a_] if a_ % 2 == 0 else G['t']
        gs.append(cmul(dst, src, E[1], T1, T2) + emit(rowsof(a_), dst, True, CV[a_ & 1]))
    k = 0
    for lvl in range(1, 8):
        for a_ in (0, 2, 4, 6, 8):
            if rowsof(256 * lvl + a_):
                k += 1
                gs.append(cmul(G[a_], G[a_], E[256], T1, T2) + emit(rowsof(256 * lvl + a_), G[a_], True, CV[k & 1]))
    hs = []
    hs.append([f'v_mov_b32 {v(CV[2])}, 0x3f803f80', f'v_mov_b32 {v(CV[2] + 1)}, 0',
               f'ds_write_b64 {v(vTW)}, {v(CV[2], 2)} offset:{31 * RS}'])
    hs.append(emit([32], E[8], False, CV[3]))
    for j in range(2, 32):
        hs.append(cmul(H, E[8] if j == 2 else H, E[8], T3, T4) + emit([31 + j], H, False, CV[2 + (j & 1)]))
    gfl = [x for st in gs for x in st]
    hfl = [x for st in hs for x in st]
    A('.p2align 3, 0')
    A.lines[-1] = '.p2alignl 3, 0xbf800000'
    i = j = 0
    while i < len(gfl) or j < len(hfl):
        if j < len(hfl):
            A(hfl[j]); j += 1
        if i < len(gfl):
            A(gfl[i]); i += 1
    TA = 96
    FB = 112
    A('s_waitcnt lgkmcnt(0)')
    tags = []
    for q in range(16):
        if q >= 6:
            A.wait(lt=tags[q - 6])
            qq = q - 6
            A(f'v_mfma_f32_32x32x16_bf16 {v(TA, 16)}, {v(FB + 8 * (qq % 8), 4)}, {v(FB + 8 * (qq % 8) + 4, 4)}, {v(TA, 16) if qq else 0}')
        A(f'ds_read_b128 {v(FB + 8 * (q % 8), 4)}, {v(vTR)} offset:{32 * q}')
        A(f'ds_read_b128 {v(FB + 8 * (q % 8) + 4, 4)}, {v(vTR)} offset:{31 * RS + 32 * q}')
        tags.append(A.ltag())
    for qq in range(10, 16):
        A.wait(lt=tags[qq])
        A(f'v_mfma_f32_32x32x16_bf16 {v(TA, 16)}, {v(FB + 8 * (qq % 8), 4)}, {v(FB + 8 * (qq % 8) + 4, 4)}, {v(TA, 16)}')
    A(f'''
    s_mul_i32 s3, {s(sW)}, {TBL}
    v_lshl_add_u32 v6, {v(vL)}, 4, s3
    s_xor_b32 s40, {s(sW)}, 1
    s_mul_i32 s40, s40, {TBL}
    v_lshl_add_u32 v7, {v(vL)}, 4, s40
    s_mul_i32 s41, {s(sCH)}, {D_STRIDE}
    s_add_u32 s41, s41, {L_D + 64}
    v_and_b32 v16, 31, {v(vL)}
    v_lshl_add_u32 v16, v16, 5, s41
    v_lshrrev_b32 v17, 5, {v(vL)}
    v_and_b32 v19, 1, {v(vL)}
    v_cmp_eq_u32 vcc, 1, v19
    s_cmp_eq_u32 {s(sHALF)}, 0
    s_cbranch_scc0 K1_XH1
    ''')
    K = 112
    P = 120
    for half in range(2):
        keep, send = TA + 8 * half, TA + 8 * (1 - half)
        if half:
            A('K1_XH1:')
            A('s_nop 7')
        A(f'''
        ds_write_b128 v6, {v(send, 4)}
        ds_write_b128 v6, {v(send + 4, 4)} offset:1024
        s_waitcnt lgkmcnt(0)
        s_barrier
        ds_read_b128 {v(K, 4)}, v7
        ds_read_b128 {v(K + 4, 4)}, v7 offset:1024
        v_lshl_add_u32 v18, v17, 4, v16
        v_lshl_add_u32 v19, v17, {10 if half == 0 else 11}, v16
        s_waitcnt lgkmcnt(0)
        ''')
        for q in range(4):
            A(f'v_pk_add_f32 {v(K + 2 * q, 2)}, {v(K + 2 * q, 2)}, {v(keep + 2 * q, 2)}')
        cv = lambda d, lo, hi: A(f'v_cvt_pk_bf16_f32 {v(d)}, {v(lo)}, {v(hi)}')
        if half == 0:
            for q in range(4):
                cv(P + q, K + q + 1, K + q)
            A(f'ds_write_b128 v18, {v(P, 4)}')
            a_, b_, c_ = K + 5, K + 6, K + 7
            seq = [a_, a_, a_, b_, b_, b_, c_, c_, c_]
            for q in range(8):
                cv(P + 4 + q, seq[q + 1], seq[q])
            A(f'ds_write_b128 v19, {v(P + 4, 4)} offset:{2 * 1024}')
            A(f'ds_write_b128 v19, {v(P + 8, 4)} offset:{2 * 1024 + 16}')
            A(f'''
            v_mov_b32 {v(P + 12)}, 0
            v_mov_b32 {v(P + 13)}, 0
            v_mov_b32 {v(P + 14)}, 0
            v_mov_b32 {v(P + 15)}, 0
            v_mov_b32 {v(P + 16)}, 0
            v_cvt_pk_bf16_f32 {v(P + 17)}, {v(K)}, 0
            v_subrev_u32 v18, 64, v16
            s_mov_b64 exec, 1
            ds_write_b128 v18, {v(P + 12, 4)}
            ds_write_b128 v18, {v(P + 12, 4)} offset:16
            ds_write_b128 v18, {v(P + 12, 4)} offset:32
            ds_write_b128 v18, {v(P + 14, 4)} offset:48
            s_mov_b64 exec, -1
            s_branch K1_XD
            ''')
        else:
            p_, q_, r_ = K, K + 1, K + 2
            seq = [p_, p_, q_, r_, r_]
            for q in range(4):
                cv(P + q, seq[q + 1], seq[q])
            A(f'ds_write_b128 v18, {v(P, 4)} offset:1024')
            for z in range(2):
                a_, b_, t_ = K + 3 + 2 * z, K + 4 + 2 * z, K + 7
                A(f'v_cndmask_b32 {v(t_)}, {v(a_)}, {v(b_)}, vcc')
                seq = [a_, a_, a_, a_, t_, b_, b_, b_, b_]
                for q in range(8):
                    cv(P + 4 + 8 * z + q, seq[q + 1], seq[q])
                A(f'ds_write_b128 v19, {v(P + 4 + 8 * z, 4)} offset:{(4 + z) * 1024}')
                A(f'ds_write_b128 v19, {v(P + 8 + 8 * z, 4)} offset:{(4 + z) * 1024 + 16}')
    A('K1_XD:')
    A(f'''
    s_lshl_b32 s40, {s(sHALF)}, 9
    s_add_u32 s40, s40, s41
    s_add_u32 s40, s40, {4 * (16 - 7)}
    v_and_b32 v6, 15, {v(vL)}
    v_lshrrev_b32 v7, 4, {v(vL)}
    v_lshlrev_b32 v16, 5, v7
    v_lshl_add_u32 v17, v6, 2, s40
    v_sub_u32 v17, v17, v16
    s_waitcnt lgkmcnt(0)
    s_barrier
    ''')
    for a_ in range(8):
        for r in range(4):
            f = 32 * r + 4 * a_
            A(f'ds_read2_b32 {a(f, 2)}, v17 offset0:{32 * r + 6} offset1:{32 * r + 4}')
            A(f'ds_read2_b32 {a(f + 2, 2)}, v17 offset0:{32 * r + 2} offset1:{32 * r}')
        if a_ < 7:
            A('v_add_u32 v17, 1024, v17')
    vH, vUW, vBW, vBR, vFW, vFR, vST, vSA = 20, 21, 22, 23, 24, 25, 26, 27
    A(f'''
    s_mul_i32 s3, {s(sCH)}, {U_STRIDE}
    s_lshl_b32 s40, {s(sHALF)}, 8
    s_sub_u32 s3, s3, s40
    s_add_u32 s3, s3, {L_U + 256}
    v_lshlrev_b32 v16, 5, v6
    v_lshlrev_b32 v17, 4, v7
    v_add3_u32 {v(vH)}, v16, v17, s3
    v_lshlrev_b32 {v(vSA)}, 4, v0
    v_add_u32 {v(vUW)}, {L_U + 480}, {v(vSA)}
    v_lshlrev_b32 {v(vBW)}, 5, v0
    v_add_u32 {v(vBW)}, {L_BASE}, {v(vBW)}
    s_lshl_b32 s3, {s(sW)}, 12
    s_add_u32 s40, s3, {L_BASE}
    v_lshlrev_b32 v16, 6, v6
    v_add3_u32 {v(vBR)}, v16, v17, s40
    s_add_u32 s40, s3, {L_FX}
    v_lshl_add_u32 {v(vFW)}, {v(vL)}, 4, s40
    s_xor_b32 s3, s3, 4096
    s_add_u32 s40, s3, {L_FX}
    v_lshl_add_u32 {v(vFR)}, {v(vL)}, 4, s40
    v_lshrrev_b32 v16, 2, v6
    v_mul_u32_u24 v16, {PANEL}, v16
    v_and_b32 v17, 3, v6
    v_lshlrev_b32 v17, 5, v17
    v_lshl_add_u32 v17, v7, 3, v17
    s_lshl_b32 s3, {s(sP)}, 1
    s_add_u32 s3, s3, {s(sCH)}
    s_lshl_b32 s3, s3, 7
    s_mul_i32 s40, {s(sHALF)}, {16 * PANEL}
    s_add_u32 s3, s3, s40
    s_add_u32 s3, s3, {WS_HT}
    v_add3_u32 {v(vST)}, v16, v17, s3
    ''')
    X0, X1, U0, U1, ST = 32, 40, 48, 56, 64
    A.wait(vt=t_gat)
    for i in range(8):
        A(f'v_lshlrev_b32 {v(X0 + i)}, 16, {v(vX + i)}')
        A(f'v_and_b32 {v(X1 + i)}, 0xffff0000, {v(vX + i)}')
    A(f'''
    v_mov_b32 v16, 128
    s_mov_b32 s54, 0x100000
    K1_POLL:
    global_load_dword v17, v16, {s(S_DBG, 2)} sc1
    s_sub_u32 s54, s54, 1
    s_cselect_b32 s55, 0, 1
    s_waitcnt vmcnt(0)
    v_cmp_gt_u32 vcc, s55, v17
    s_cbranch_vccnz K1_POLL
    ''')
    A(f'v_add_u32 v16, {WS_STATS + 4096}, {v(vSA)}')
    A(f'v_add_u32 v17, {WS_STATS + 12288}, {v(vSA)}')
    tg = []
    for j in range(4):
        A(f'global_load_dwordx4 {v(ST + 4 * j, 4)}, {v(16 + j // 2)}, {s(S_WS, 2)} offset:{-4096 if j % 2 == 0 else 0} sc1')
        tg.append(A.vtag())
    pack_finish(A, sW, vL, 6, 7, 96)
    CU = 80
    for j in range(4):
        A.wait(vt=tg[j])
        for (X, U, c) in ((X0, U0, 0), (X1, U1, 1)):
            A(f'v_pk_fma_f32 {v(U + 2 * j, 2)}, {v(X + 2 * j, 2)}, {v(ST + 4 * j, 2)}, {v(ST + 4 * j + 2, 2)}')
        for (X, U, c) in ((X0, U0, 0), (X1, U1, 1)):
            A(f'v_cvt_pk_bf16_f32 {v(CU + 4 * c + j)}, {v(U + 2 * j)}, {v(U + 2 * j + 1)}')
    A(f'''
    ds_write_b128 {v(vUW)}, {v(CU, 4)}
    ds_write_b128 {v(vUW)}, {v(CU + 4, 4)} offset:{U_STRIDE}
    s_waitcnt lgkmcnt(0)
    s_barrier
    ''')
    ACC = 96
    HB = [128, 160]
    filler = []
    for j in range(8):
        filler.append(f'v_fma_f32 {v(X0 + j)}, {v(U0 + j)}, s52, {v(X0 + j)}')
    filler.append(f'ds_write_b128 {v(vBW)}, {v(X0, 4)}')
    filler.append(f'ds_write_b128 {v(vBW)}, {v(X0 + 4, 4)} offset:16')
    for j in range(8):
        filler.append(f'v_fma_f32 {v(X1 + j)}, {v(U1 + j)}, s53, {v(X1 + j)}')
    filler.append(f'ds_write_b128 {v(vBW)}, {v(X1, 4)} offset:8192')
    filler.append(f'ds_write_b128 {v(vBW)}, {v(X1 + 4, 4)} offset:{8192 + 16}')

    def hread(r, b):
        A(f'ds_read_b128 {v(HB[r & 1] + 4 * b, 4)}, {v(vH)} offset:{512 * b + 64 * (3 - r)}')
        return A.ltag()
    ht = {}
    for b in range(8):
        ht[(0, b)] = hread(0, b)
    for r in range(4):
        n = 0
        for b in range(8):
            if r == 0 or b == 0:
                A.wait(lt=ht[(r, b if r == 0 else 7)])
            for a_ in range(8 - b):
                t = a_ + b
                c = 0 if (r == 0 and b == 0) else v(ACC + 4 * t, 4)
                A(f'v_mfma_f32_16x16x32_bf16 {v(ACC + 4 * t, 4)}, {a(32 * r + 4 * a_, 4)}, {v(HB[r & 1] + 4 * b, 4)}, {c}')
                n += 1
                if r < 3 and n >= 8 and n < 24 and n % 2 == 0:
                    ht[(r + 1, (n - 8) // 2)] = hread(r + 1, (n - 8) // 2)
                elif r == 1 and filler and n >= 2:
                    A(filler.pop(0))
    assert not filler
    A(f's_cmp_eq_u32 {s(sHALF)}, 0')
    A('s_cbranch_scc0 K1_EH1')
    RB, RP = 128, 144
    for half in range(2):
        keep, send = ACC + 16 * half, ACC + 16 * (1 - half)
        if half:
            A('K1_EH1:')
            A('s_nop 7')
        for q in range(4):
            A(f'ds_write_b128 {v(vFW)}, {v(send + 4 * q, 4)} offset:{1024 * q}')
        A('s_waitcnt lgkmcnt(0)')
        A('s_barrier')
        tg = []
        for q in range(4):
            A(f'ds_read_b128 {v(RB + 4 * q, 4)}, {v(vBR)} offset:{1024 * q}')
            A(f'ds_read_b128 {v(RP + 4 * q, 4)}, {v(vFR)} offset:{1024 * q}')
            tg.append(A.ltag())
        for q in range(4):
            A.wait(lt=tg[q])
            for e in range(2):
                A(f'v_pk_add_f32 {v(RB + 4 * q + 2 * e, 2)}, {v(RB + 4 * q + 2 * e, 2)}, {v(keep + 4 * q + 2 * e, 2)}')
            for e in range(2):
                A(f'v_pk_add_f32 {v(RB + 4 * q + 2 * e, 2)}, {v(RB + 4 * q + 2 * e, 2)}, {v(RP + 4 * q + 2 * e, 2)}')
            for e in range(2):
                A(f'v_cvt_pk_bf16_f32 {v(32 + 2 * q + e)}, {v(RB + 4 * q + 2 * e)}, {v(RB + 4 * q + 2 * e + 1)}')
            A(f'global_store_dwordx2 {v(vST)}, {v(32 + 2 * q, 2)}, {s(S_WS, 2)}')
            if q < 3:
                A(f'v_add_u32 {v(vST)}, {4 * PANEL}, {v(vST)}')
        A('s_endpgm')

    A('K1_LN:')
    A.vm = 0
    A.lg = 0
    LX = 16
    A(f'''
    s_lshl_b32 s3, s2, 2
    s_add_u32 s3, s3, {s(sW)}
    s_mul_i32 s3, s3, {16 * 896}
    v_lshrrev_b32 v2, 3, {v(vL)}
    v_mul_u32_u24 v3, 896, v2
    v_and_b32 v4, 7, {v(vL)}
    v_lshlrev_b32 v5, 4, v4
    v_add3_u32 v3, v3, v5, s3
    v_add_u32 v5, {8 * 896}, v3
    s_waitcnt lgkmcnt(0)
    ''')
    tg = []
    for g in range(2):
        for i in range(7):
            A(f'global_load_dwordx4 {v(LX + 28 * g + 4 * i, 4)}, {v(5 if g else 3)}, {s(S_X, 2)} offset:{128 * i}')
            tg.append(A.vtag())
    pack_issue(A, sW, vL, 6, 7)
    t_pk = A.vtag()
    A('s_mov_b32 s50, 0x3f803f80')
    S1, S2 = 8, 10
    for g in range(2):
        for i in range(7):
            A.wait(vt=tg[7 * g + i])
            for e in range(4):
                x = v(LX + 28 * g + 4 * i + e)
                first = (i == 0 and e == 0)
                A(f'v_dot2_f32_bf16 {v(S1 + g)}, {x}, s50, {0 if first else v(S1 + g)}')
                A(f'v_dot2_f32_bf16 {v(S2 + g)}, {x}, {x}, {0 if first else v(S2 + g)}')
    for dpp in ('quad_perm:[1,0,3,2]', 'quad_perm:[2,3,0,1]', 'row_half_mirror'):
        for r in range(4):
            A(f'v_add_f32_dpp {v(8 + r)}, {v(8 + r)}, {v(8 + r)} {dpp} row_mask:0xf bank_mask:0xf')
    for g in range(2):
        A(f'''
        v_mul_f32 {v(S1 + g)}, {f2u(1.0 / 448)}, {v(S1 + g)}
        v_mul_f32 {v(S2 + g)}, {f2u(1.0 / 448)}, {v(S2 + g)}
        v_fma_f32 {v(S2 + g)}, -{v(S1 + g)}, {v(S1 + g)}, {v(S2 + g)}
        v_max_f32 {v(S2 + g)}, 0, {v(S2 + g)}
        v_add_f32 {v(S2 + g)}, {f2u(EPS)}, {v(S2 + g)}
        v_rsq_f32 {v(S2 + g)}, {v(S2 + g)}
        v_mul_f32_e64 {v(S1 + g)}, -{v(S1 + g)}, {v(S2 + g)}
        ''')
    A(f'''
    v_lshrrev_b32 v3, 1, v2
    v_lshlrev_b32 v3, 7, v3
    v_and_b32 v5, 1, v2
    v_lshl_add_u32 v3, v5, 2, v3
    s_lshl_b32 s3, {s(sW)}, 5
    v_add_u32 v3, s3, v3
    ds_write2_b32 v3, {v(S2)}, {v(S1)} offset0:0 offset1:2
    ds_write2_b32 v3, {v(S2 + 1)}, {v(S1 + 1)} offset0:4 offset1:6
    s_waitcnt lgkmcnt(0)
    s_barrier
    s_cmp_lg_u32 {s(sW)}, 0
    s_cbranch_scc1 K1_LN2
    v_and_b32 v3, 31, {v(vL)}
    v_lshlrev_b32 v5, 4, v3
    ds_read_b128 v[12:15], v5
    v_lshrrev_b32 v3, 3, v3
    v_lshlrev_b32 v3, 12, v3
    v_lshl_add_u32 v3, v4, 4, v3
    s_lshl_b32 s3, s2, 7
    s_add_u32 s3, s3, {WS_STATS}
    v_add_u32 v3, s3, v3
    v_mov_b32 v8, 0
    v_mov_b32 v9, 1
    s_mov_b32 exec_hi, 0
    s_waitcnt lgkmcnt(0)
    global_store_dwordx4 v3, v[12:15], {s(S_WS, 2)} sc1
    s_mov_b64 exec, 1
    s_waitcnt vmcnt(0)
    global_atomic_add v10, v8, v9, {s(S_DBG, 2)} sc0 sc1
    s_waitcnt vmcnt(0)
    v_cmp_eq_u32 vcc, 31, v10
    s_cbranch_vccz K1_LN1
    global_store_dword v8, v9, {s(S_DBG, 2)} offset:128 sc1
    K1_LN1:
    s_mov_b64 exec, -1
    K1_LN2:
    s_waitcnt vmcnt(0)
    ''')
    pack_finish(A, sW, vL, 6, 7, 96)
    A(f'''
    s_mul_i32 s3, s2, {NFLAG // 32}
    v_min_u32 v3, {NFLAG // 32 - 1}, v0
    v_add_u32 v3, s3, v3
    v_lshlrev_b32 v3, 7, v3
    v_add_u32 v3, {WS_FLAGS}, v3
    v_mov_b32 v8, 0
    s_cmp_lg_u32 {s(sW)}, 0
    s_cbranch_scc1 K1_END
    global_store_dword v3, v8, {s(S_WS, 2)}
    K1_END:
    s_endpgm
    ''')
    return A
```

```python
from asmgen import *
from gen_k1 import (WS_FLAGS, WS_CS, WS_HT, WS_G, WS_X1, WS_WP, WS_T, WS_END, PANEL, f2u, LOG2E, EPS, tr_addr)
import math

L_A = 0
L_B = 65536
L_RES = 122880
K2_LDS = 139264
GC1 = -2.0 * math.sqrt(2.0 / math.pi) * LOG2E
GC2 = GC1 * 0.044715
MF = 'v_mfma_f32_32x32x16_bf16'


def cost(x):
    if callable(x):
        return getattr(x, 'cost', 4)
    return 8 if x.split()[0] in TRANS else 4


def weave(A, mfmas, fixed, filler, start=0, end=None):
    n = len(mfmas)
    end = n if end is None else end
    slack = [max(0, 24 - sum(cost(x) for x in fixed.get(i, []))) if start <= i < end else 0 for i in range(n)]
    tot = sum(cost(x) for x in filler)
    room = sum(slack)
    extra = max(0, tot - room) / max(1, end - start)
    k = 0
    acc = 0.0
    done = 0
    for i in range(n):
        m = mfmas[i]
        m() if callable(m) else A(m)
        for x in fixed.get(i, []):
            x() if callable(x) else A(x)
        if start <= i < end:
            acc += slack[i] + extra
            while k < len(filler) and (done + cost(filler[k]) <= acc + 0.01 or i == end - 1):
                x = filler[k]
                x() if callable(x) else A(x)
                done += cost(x)
                k += 1
    assert k == len(filler)


def gen_k2(ts=False):
    A = Asm()
    tail = []
    SRD = 's[8:11]'
    sW, sMT, sNT, sBLK, sS = 12, 13, 14, 15, 16
    sM = 20
    sOOB = 28
    vL, vL16, vD, vTB, vA, vB, vW3, vW4, vW4b, vT, vTb, vF, vG0, vG1, vFL, vO = 1, 2, 3, 4, 5, 6, 7, 8, 9, 10, 11, 12, 13, 14, 15, 16
    vX1, vXS, vRW = 17, 18, 19
    SA, SB, SR = 20, 22, 24
    TMP = 26
    ACC = [32, 48]
    OWN = 64
    RING = 96
    AX = 120
    W4 = 128
    BX = 240
    T2 = 248
    nts = [0]

    def stamp():
        if ts:
            A(f's_memrealtime s[{60 + 2 * nts[0]}:{61 + 2 * nts[0]}]')
            nts[0] += 1

    stamp()
    A(f'''
    s_cmp_ge_u32 s2, 224
    s_cbranch_scc1 K2_END
    s_load_dwordx2 s[4:5], s[0:1], 96
    s_load_dwordx2 s[8:9], s[0:1], 112
    v_lshrrev_b32 v3, 6, v0
    v_and_b32 {v(vL)}, 63, v0
    v_readfirstlane_b32 {s(sW)}, v3
    s_and_b32 s3, s2, 7
    s_lshr_b32 s17, s2, 3
    s_mul_i32 s18, s17, 37
    s_lshr_b32 s18, s18, 8
    s_mul_i32 s19, s18, 7
    s_sub_u32 {s(sS)}, s17, s19
    s_lshl_b32 s3, s3, 2
    s_add_u32 {s(sBLK)}, s3, s18
    s_mov_b32 s10, {WS_END}
    s_mov_b32 s11, 0x20000
    s_and_b32 {s(sMT)}, {s(sW)}, 1
    s_lshr_b32 {s(sNT)}, {s(sW)}, 1
    v_lshlrev_b32 {v(vL16)}, 4, {v(vL)}
    s_mul_i32 s17, {s(sBLK)}, {PANEL}
    s_add_u32 s17, s17, {WS_HT}
    s_mul_i32 s18, {s(sS)}, {PANEL}
    s_add_u32 s18, s18, {WS_WP}
    s_cmp_eq_u32 {s(sNT)}, 0
    s_cselect_b32 s17, s17, s18
    s_cselect_b32 s18, 4, 0
    s_lshl_b32 s19, {s(sMT)}, 12
    s_add_u32 s17, s17, s19
    s_lshl_b32 s3, {s(sNT)}, 16
    s_add_u32 s3, s3, s19
    v_lshrrev_b32 {v(vD)}, 2, {v(vL)}
    v_and_b32 {v(vD)}, s18, {v(vD)}
    v_xor_b32 {v(vD)}, {v(vD)}, {v(vL)}
    v_lshlrev_b32 {v(vD)}, 4, {v(vD)}
    s_mov_b32 m0, s3
    s_waitcnt lgkmcnt(0)
    ''')
    tg1 = []
    for c in range(7):
        for q in range(4):
            A(f'buffer_load_dwordx4 {v(vD)}, {SRD}, s17 offen offset:{1024 * q} lds')
        tg1.append(A.vtag())
        if c < 6:
            A('s_add_u32 m0, m0, 8192')
            A('s_add_u32 s17, s17, 8192')
    CS1, CS3 = 96, 192
    A(f'''
    v_lshlrev_b32 {v(TMP)}, 2, {v(vL)}
    s_mul_i32 s17, {s(sS)}, 3584
    s_add_u32 s17, s17, {WS_CS}
    s_lshl_b32 s18, {s(sS)}, 2
    s_add_u32 s18, s18, {s(sW)}
    s_add_u32 s18, s18, 14
    s_mul_i32 s19, s18, 3584
    s_add_u32 s19, s19, {WS_CS}
    s_mul_i32 s18, s18, {PANEL}
    s_add_u32 s18, s18, {WS_WP}
    v_add_u32 {v(vW3)}, s18, {v(vL16)}
    ''')
    for j in range(14):
        A(f'buffer_load_dword {v(CS1 + j)}, {v(TMP)}, {SRD}, s17 offen offset:{256 * j}')
    t_cs1 = A.vtag()

    w3n = [0]

    def w3_batch(n=14):
        for _ in range(n):
            p = w3n[0]
            ks, mt = p >> 1, p & 1
            if p and p % 4 == 0:
                A(f'v_add_u32 {v(vW3)}, 4096, {v(vW3)}')
            A(f'buffer_load_dwordx4 {a(112 * mt + 4 * ks, 4)}, {v(vW3)}, {SRD}, 0 offen offset:{1024 * (p % 4)}')
            w3n[0] += 1
    w3_batch()
    tr_addr(A, vTB, vL, TMP + 1)
    A(f'''
    s_lshl_b32 s3, {s(sNT)}, 6
    v_xor_b32 {v(vTB)}, s3, {v(vTB)}
    s_lshl_b32 s3, {s(sMT)}, 10
    s_add_u32 s3, s3, {L_B}
    v_add_u32 {v(vA)}, s3, {v(vL16)}
    s_lshl_b32 s3, {s(sNT)}, 10
    v_add_u32 {v(vB)}, s3, {v(vL16)}
    s_lshl_b32 s32, {s(sS)}, 2
    s_lshl_b32 s3, {s(sMT)}, 1
    s_add_u32 s32, s32, s3
    s_lshl_b32 s33, {s(sBLK)}, 6
    s_lshl_b32 s3, {s(sNT)}, 5
    s_add_u32 s33, s33, s3
    v_and_b32 {v(TMP + 1)}, 31, {v(vL)}
    v_lshrrev_b32 {v(TMP + 2)}, 5, {v(vL)}
    ''')
    for q in range(2):
        g = (vG0, vG1)[q]
        A(f'''
        s_add_u32 s34, s32, {q}
        s_mul_i32 s35, s34, 37
        s_lshr_b32 s35, s35, 8
        s_lshr_b32 s36, s35, 1
        s_add_u32 s36, s36, 1
        s_sub_u32 s37, 0, s36
        s_bitcmp1_b32 s35, 0
        s_cselect_b32 s36, s37, s36
        s_add_u32 s36, s36, s33
        s_lshl_b32 s34, s34, 11
        s_add_u32 s34, s34, {WS_G}
        v_add_u32 {v(TMP + 3)}, s36, {v(TMP + 1)}
        v_cmp_lt_u32 vcc, 2047, {v(TMP + 3)}
        s_mov_b64 {s(sOOB + 2 * q, 2)}, vcc
        v_bfe_u32 {v(TMP + 4)}, {v(TMP + 3)}, 6, 5
        v_mul_u32_u24 {v(g)}, {PANEL}, {v(TMP + 4)}
        v_bfe_u32 {v(TMP + 4)}, {v(TMP + 3)}, 5, 1
        v_lshl_add_u32 {v(g)}, {v(TMP + 4)}, 10, {v(g)}
        v_and_b32 {v(TMP + 4)}, 31, {v(TMP + 3)}
        v_lshl_add_u32 {v(g)}, {v(TMP + 4)}, 4, {v(g)}
        v_lshl_add_u32 {v(g)}, {v(TMP + 2)}, 9, {v(g)}
        v_add_u32 {v(g)}, s34, {v(g)}
        ''')
    A(f'''
    s_lshl_b32 s34, {s(sBLK)}, 16
    s_add_u32 s34, s34, {WS_X1}
    s_mul_i32 s35, {s(sNT)}, 36864
    s_lshl_b32 s36, s32, 10
    s_add_u32 s35, s35, s36
    s_add_u32 s35, s35, s34
    v_add_u32 {v(vX1)}, s35, {v(vL16)}
    s_lshl_b32 s35, {s(sS)}, 10
    s_add_u32 s35, s35, s34
    s_lshl_b32 s36, {s(sNT)}, 9
    s_add_u32 s35, s35, s36
    s_lshl_b32 s36, {s(sMT)}, 3
    s_add_u32 s35, s35, s36
    s_add_u32 s35, s35, 28672
    v_lshlrev_b32 {v(vXS)}, 4, {v(TMP + 1)}
    v_lshl_add_u32 {v(vXS)}, {v(TMP + 2)}, 2, {v(vXS)}
    v_add_u32 {v(vXS)}, s35, {v(vXS)}
    v_add_u32 {v(vO)}, s33, {v(TMP + 1)}
    v_mul_u32_u24 {v(vO)}, 896, {v(vO)}
    v_lshl_add_u32 {v(vO)}, {v(TMP + 2)}, 4, {v(vO)}
    s_lshl_b32 s35, s32, 5
    v_add_u32 {v(vO)}, s35, {v(vO)}
    s_mul_i32 s35, {s(sS)}, {112 * 2048}
    s_lshl_b32 s36, {s(sW)}, 13
    s_add_u32 s35, s35, s36
    s_add_u32 s35, s35, {WS_WP + 42 * PANEL}
    v_add_u32 {v(vW4)}, s35, {v(vL16)}
    v_add_u32 {v(vW4b)}, 4096, {v(vW4)}
    s_mul_i32 s35, {s(sBLK)}, {7 * 32768}
    s_add_u32 s35, s35, s36
    s_add_u32 s35, s35, {WS_T}
    v_add_u32 {v(vT)}, s35, {v(vL16)}
    v_add_u32 {v(vTb)}, 4096, {v(vT)}
    s_lshl_b32 s35, {s(sW)}, 12
    s_add_u32 s35, s35, {L_RES}
    v_add_u32 {v(vRW)}, s35, {v(vL16)}
    s_mul_i32 s38, {s(sBLK)}, 7
    s_add_u32 s39, s38, {s(sS)}
    s_lshl_b32 s39, s39, 7
    s_add_u32 s39, s39, {WS_FLAGS}
    s_add_u32 s35, s38, 217
    v_min_u32 {v(vFL)}, 20, {v(vL)}
    v_add_u32 {v(vFL)}, s35, {v(vFL)}
    v_subrev_u32 {v(TMP + 3)}, 224, {v(vFL)}
    v_min_u32 {v(vFL)}, {v(vFL)}, {v(TMP + 3)}
    v_subrev_u32 {v(TMP + 3)}, 224, {v(vFL)}
    v_min_u32 {v(vFL)}, {v(vFL)}, {v(TMP + 3)}
    v_lshlrev_b32 {v(vFL)}, 7, {v(vFL)}
    v_add_u32 {v(vFL)}, {WS_FLAGS}, {v(vFL)}
    ''')
    for q in range(7):
        A(f'''
        s_add_u32 s35, {s(sS)}, {q}
        s_sub_u32 s36, s35, 7
        s_min_u32 s35, s35, s36
        s_lshl_b32 {s(sM + q)}, s35, 15
        ''')
    A('s_mov_b32 s27, 0x3f803f80')

    FB = 128
    S1, S2 = TMP + 4, TMP + 5
    HOWN, HF, GP = 64, 72, 88
    lt = {}

    def g1_compute(c):
        A.wait(lt=lt[c])
        for k in range(4):
            b = FB + 32 * (c & 1) + 8 * k + 4
            for e in range(4):
                first = (c == 0 and k == 0 and e == 0)
                A(f'v_dot2_f32_bf16 {v(S1)}, {v(b + e)}, s27, {0 if first else v(S1)}')
                A(f'v_dot2_f32_bf16 {v(S2)}, {v(b + e)}, {v(b + e)}, {0 if first else v(S2)}')
        return [f'{MF} {v(ACC[0], 16)}, {v(FB + 32 * (c & 1) + 8 * k, 4)}, {v(FB + 32 * (c & 1) + 8 * k + 4, 4)}, '
                f'{0 if (c == 0 and k == 0) else v(ACC[0], 16)}' for k in range(4)]
    for c in range(7):
        A.wait(vt=tg1[c])
        A('s_barrier')
        if c == 0:
            stamp()
        for k in range(4):
            ks = 4 * c + k
            f = FB + 32 * (c & 1) + 8 * k
            A(f'ds_read_b64_tr_b16 {v(f + 4, 2)}, {v(vTB)} offset:{2048 * ks}')
            A(f'ds_read_b64_tr_b16 {v(f + 6, 2)}, {v(vTB)} offset:{2048 * ks + 1024}')
            A(f'ds_read_b128 {v(f, 4)}, {v(vA)} offset:{2048 * ks}')
        lt[c] = A.ltag()
        if c > 0:
            for m in g1_compute(c - 1):
                A(m)
    A(f's_lshl_b32 s3, s32, 11')
    A(f'v_add_u32 {v(TMP)}, s3, {v(vTB)}')
    for q in range(4):
        A(f'ds_read_b64_tr_b16 {v(HOWN + 2 * q, 2)}, {v(TMP)} offset:{1024 * q}')
    A.wait(vt=t_cs1)

    def cs_frag(src, dst0, dst1):
        o = []
        for j in range(7):
            o.append(f'v_add_f32 {v(src + j)}, {v(src + j)}, {v(src + 7 + j)}')
        for (x, y) in ((0, 1), (2, 3), (4, 5), (0, 6), (2, 4), (0, 2)):
            o.append(f'v_add_f32 {v(src + x)}, {v(src + x)}, {v(src + y)}')
        o += [f'v_cvt_pk_bf16_f32 {v(src + 1)}, {v(src)}, {v(src)}',
              f'v_and_b32 {v(src + 2)}, 0xffff0000, {v(src + 1)}',
              f'v_sub_f32 {v(src + 2)}, {v(src)}, {v(src + 2)}',
              f'v_cvt_pk_bf16_f32 {v(src + 2)}, {v(src + 2)}, 0']
        return o
    for x in cs_frag(CS1, 0, 0):
        A(x)
    A(f'''
    v_lshrrev_b32 {v(TMP)}, 5, {v(vL)}
    v_cmp_eq_u32 vcc, {s(sMT)}, {v(TMP)}
    v_mov_b32 {v(AX + 2)}, 0
    v_mov_b32 {v(AX + 3)}, 0
    v_cndmask_b32 {v(AX)}, 0, {v(CS1 + 1)}, vcc
    v_cndmask_b32 {v(AX + 1)}, 0, {v(CS1 + 2)}, vcc
    v_mov_b32 {v(BX + 2)}, 0
    v_mov_b32 {v(BX + 3)}, 0
    ''')
    last = g1_compute(6)
    M_, R1, RR, V_ = SA, SA + 1, SB, SB + 1
    st = [f'v_mov_b32 {v(TMP)}, {v(S1)}',
          f'v_mov_b32 {v(TMP + 1)}, {v(S2)}',
          f'v_permlane32_swap_b32 {v(S1)}, {v(TMP)}',
          f'v_permlane32_swap_b32 {v(S2)}, {v(TMP + 1)}',
          f'v_add_f32 {v(S1)}, {v(S1)}, {v(TMP)}',
          f'v_add_f32 {v(S2)}, {v(S2)}, {v(TMP + 1)}',
          f'v_mul_f32 {v(M_)}, {f2u(-1.0 / 448)}, {v(S1)}',
          f'v_mul_f32 {v(V_)}, {f2u(1.0 / 448)}, {v(S2)}',
          f'v_cvt_pk_bf16_f32 {v(BX + 1)}, {v(M_)}, 0',
          f'v_lshlrev_b32 {v(TMP)}, 16, {v(BX + 1)}',
          f'v_sub_f32 {v(TMP)}, {v(M_)}, {v(TMP)}',
          f'v_cvt_pk_bf16_f32 {v(BX)}, {v(M_)}, {v(TMP)}']
    weave(A, last, {}, st, 0, 3)
    A(f'{MF} {v(ACC[0], 16)}, {v(AX, 4)}, {v(BX, 4)}, {v(ACC[0], 16)}')
    A(f'''
    v_fma_f32 {v(V_)}, -{v(M_)}, {v(M_)}, {v(V_)}
    v_max_f32 {v(V_)}, 0, {v(V_)}
    v_add_f32 {v(TMP)}, {f2u(EPS)}, {v(V_)}
    v_rsq_f32 {v(R1)}, {v(TMP)}
    v_mov_b32 {v(T2)}, {f2u(GC1)}
    v_mul_f32 {v(V_)}, {v(V_)}, {v(R1)}
    v_mov_b32 {v(TMP)}, {f2u(EPS)}
    v_fmac_f32 {v(TMP)}, {v(V_)}, {v(R1)}
    v_rsq_f32 {v(RR)}, {v(TMP)}
    v_mov_b32 {v(T2 + 1)}, {f2u(GC2)}
    v_mul_f32 {v(RR)}, {v(RR)}, {v(R1)}
    ''')
    stamp()
    Q = 128
    for hh in range(2):
        prs = range(4 * hh, 4 * hh + 4)
        X = lambda p: v(ACC[0] + 2 * p, 2)
        Y = lambda p: v(Q + 2 * p, 2)
        for p in prs:
            A(f'v_pk_mul_f32 {X(p)}, {X(p)}, {v(RR, 2)} op_sel_hi:[1,0]')
        for p in prs:
            A(f'v_pk_mul_f32 {Y(p)}, {X(p)}, {X(p)}')
        for p in prs:
            A(f'v_pk_fma_f32 {Y(p)}, {Y(p)}, {v(T2, 2)}, {v(T2, 2)} op_sel:[0,1,0] op_sel_hi:[1,1,0]')
        for p in prs:
            A(f'v_pk_mul_f32 {Y(p)}, {Y(p)}, {X(p)}')
        for p in prs:
            A(f'v_exp_f32 {v(Q + 2 * p)}, {v(Q + 2 * p)}')
            A(f'v_exp_f32 {v(Q + 2 * p + 1)}, {v(Q + 2 * p + 1)}')
        for p in prs:
            A(f'v_pk_add_f32 {Y(p)}, {Y(p)}, 1.0 op_sel_hi:[1,0]')
        for p in prs:
            A(f'v_rcp_f32 {v(Q + 2 * p)}, {v(Q + 2 * p)}')
            A(f'v_rcp_f32 {v(Q + 2 * p + 1)}, {v(Q + 2 * p + 1)}')
        for p in prs:
            A(f'v_pk_mul_f32 {Y(p)}, {Y(p)}, {X(p)}')
        for p in prs:
            A(f'v_cvt_pk_bf16_f32 {v(GP + p)}, {v(Q + 2 * p)}, {v(Q + 2 * p + 1)}')
        for p in prs:
            A(f'v_cndmask_b32 {v(GP + p)}, {v(GP + p)}, 0, {s(sOOB + 2 * hh, 2)}')
        A(f'buffer_store_dwordx4 {v(GP + 4 * hh, 4)}, {v((vG0, vG1)[hh])}, {SRD}, 0 offen sc1')
    t_st = A.vtag()
    stamp()
    w3_batch()
    A(f'v_lshlrev_b32 {v(TMP)}, 2, {v(vL)}')
    for j in range(14):
        A(f'buffer_load_dword {v(CS3 + j)}, {v(TMP)}, {SRD}, s19 offen offset:{256 * j}')

    def signal(soff, val):
        A(f'''
        v_mov_b32 {v(TMP)}, {val}
        s_mov_b64 exec, 1
        buffer_store_dword {v(TMP)}, off, {SRD}, {soff} sc1
        s_mov_b64 exec, -1
        ''')

    def wg_signal(soff):
        l = A.label('K2_NS')
        A(f's_cmp_lg_u32 {s(sW)}, 0')
        A(f's_cbranch_scc1 {l}')
        vm = A.vm
        signal(soff, 1)
        A.vm = vm
        A(f'{l}:')

    def spin(val):
        l = A.label('K2_SP')
        A(f'''
        s_mov_b32 s40, 0x100000
        {l}:
        buffer_load_dword {v(vF)}, {v(vFL)}, {SRD}, 0 offen sc1
        s_sub_u32 s40, s40, 1
        s_cselect_b32 s41, 0, {val}
        s_waitcnt vmcnt(0)
        v_cmp_gt_u32 vcc, s41, {v(vF)}
        s_cbranch_vccnz {l}
        ''')
    A.wait(vt=t_st, lt=A.ltag())
    A('s_barrier')
    wg_signal('s39')
    A(f'''
    s_mul_i32 s17, {s(sS)}, {PANEL}
    s_mul_i32 s18, {s(sW)}, 14336
    s_add_u32 s17, s17, s18
    s_add_u32 s17, s17, {WS_WP + 7 * PANEL}
    s_add_u32 m0, s18, {L_B}
    ''')
    for p in range(14):
        if p and p % 4 == 0:
            A('s_add_u32 m0, m0, 4096')
            A('s_add_u32 s17, s17, 4096')
        A(f'buffer_load_dwordx4 {v(vL16)}, {SRD}, s17 offen offset:{1024 * (p % 4)} lds')
    for j in range(8):
        A(f'v_lshlrev_b32 {v(HF + 2 * j)}, 16, {v(HOWN + j)}')
        A(f'v_and_b32 {v(HF + 2 * j + 1)}, 0xffff0000, {v(HOWN + j)}')
    A(f'v_mul_f32 {v(M_)}, {v(M_)}, {v(R1)}')
    for j in range(8):
        A(f'v_pk_fma_f32 {v(ACC[1] + 2 * j, 2)}, {v(HF + 2 * j, 2)}, {v(SA, 2)}, {v(SA, 2)} op_sel:[0,1,0] op_sel_hi:[1,1,0]')
    A(f'''
    s_mul_i32 s17, {s(sBLK)}, {PANEL}
    s_lshl_b32 s18, {s(sW)}, 11
    s_add_u32 s17, s17, s18
    s_add_u32 s17, s17, {WS_G}
    s_mov_b32 m0, s18
    ''')
    spin(1)
    stamp()
    tg2 = []
    for c in range(7):
        for q in range(2):
            A(f'buffer_load_dwordx4 {v(vL16)}, {SRD}, s17 offen offset:{1024 * q} sc1 lds')
        tg2.append(A.vtag())
        if c < 6:
            A('s_add_u32 m0, m0, 8192')
            A('s_add_u32 s17, s17, 8192')
    w3_batch()
    for x in cs_frag(CS3, 0, 0):
        A(x)
    A(f'''
    v_cmp_gt_u32 vcc, 32, {v(vL)}
    v_mov_b32 {v(AX + 6)}, 0
    v_mov_b32 {v(AX + 7)}, 0
    v_cndmask_b32 {v(AX)}, 0, {v(CS3 + 1)}, vcc
    v_cndmask_b32 {v(AX + 1)}, 0, {v(CS3 + 2)}, vcc
    v_cndmask_b32 {v(AX + 4)}, {v(CS3 + 1)}, {v(AX + 6)}, vcc
    v_cndmask_b32 {v(AX + 5)}, {v(CS3 + 2)}, {v(AX + 6)}, vcc
    v_mov_b32 {v(BX + 6)}, 0
    v_mov_b32 {v(BX + 7)}, 0
    s_add_u32 s35, s38, 224
    v_min_u32 {v(vFL)}, 6, {v(vL)}
    v_add_u32 {v(vFL)}, s35, {v(vFL)}
    v_lshlrev_b32 {v(vFL)}, 7, {v(vFL)}
    v_add_u32 {v(vFL)}, {WS_FLAGS}, {v(vFL)}
    s_add_u32 s39, s39, {224 * 128}
    ''')

    def g2_compute(c):
        A.wait(lt=lt[c])
        for k in range(4):
            f = FB + 32 * (c & 1) + 8 * k
            A(f'{MF} {v(ACC[1], 16)}, {v(f, 4)}, {v(f + 4, 4)}, {v(ACC[1], 16)}')
    for c in range(7):
        A.wait(vt=tg2[c])
        A('s_barrier')
        for k in range(4):
            ks = 4 * c + k
            f = FB + 32 * (c & 1) + 8 * k
            A(f'ds_read_b128 {v(f + 4, 4)}, {v(vB)} offset:{2048 * ks}')
            A(f'ds_read_b128 {v(f, 4)}, {v(vA)} offset:{2048 * ks}')
        lt[c] = A.ltag()
        if c > 0:
            g2_compute(c - 1)
    g2_compute(6)
    stamp()
    for hh in range(2):
        for p in range(4 * hh, 4 * hh + 4):
            A(f'v_cvt_pk_bf16_f32 {v(GP + p)}, {v(ACC[1] + 2 * p)}, {v(ACC[1] + 2 * p + 1)}')
        A(f'buffer_store_dwordx4 {v(GP + 4 * hh, 4)}, {v(vX1)}, {SRD}, 0 offen offset:{1024 * hh} sc1')
    for p in range(8):
        A(f'v_dot2_f32_bf16 {v(S1)}, {v(GP + p)}, s27, {0 if p == 0 else v(S1)}')
        A(f'v_dot2_f32_bf16 {v(S2)}, {v(GP + p)}, {v(GP + p)}, {0 if p == 0 else v(S2)}')
    A(f'''
    v_permlane32_swap_b32 {v(S1)}, {v(S2)}
    v_add_f32 {v(S1)}, {v(S1)}, {v(S2)}
    buffer_store_dword {v(S1)}, {v(vXS)}, {SRD}, 0 offen sc1
    ''')
    t_st = A.vtag()
    w3_batch()
    for j in range(8):
        A(f'v_pk_add_f32 {v(HF + 2 * j, 2)}, {v(HF + 2 * j, 2)}, {v(ACC[1] + 2 * j, 2)}')
    for q in range(4):
        A(f'ds_write_b128 {v(vRW)}, {v(HF + 4 * q, 4)} offset:{1024 * q}')
    A.wait(vt=t_st, lt=A.ltag())
    A('s_barrier')
    wg_signal('s39')

    def w4_load(ft, p):
        q, r = p >> 2, p & 3
        dst = v(W4 + 4 * p, 4) if ft == 0 else a(4 * p, 4)
        return f'buffer_load_dwordx4 {dst}, {v(vW4b if ft else vW4)}, {SRD}, {s(sM + q)} offen offset:{1024 * r}'
    for p in range(14):
        A(w4_load(0, p))
    A(f'''
    s_lshl_b32 s17, {s(sBLK)}, 16
    s_lshl_b32 s18, {s(sW)}, 11
    s_add_u32 s17, s17, s18
    s_add_u32 s17, s17, {WS_X1}
    s_mov_b32 m0, s18
    ''')
    spin(1)
    A('s_mov_b32 s40, 0x100000')
    stamp()
    tg3 = []
    for c in range(8):
        for q in range(2):
            A(f'buffer_load_dwordx4 {v(vL16)}, {SRD}, s17 offen offset:{1024 * q} sc1 lds')
        tg3.append(A.vtag())
        if c < 7:
            A('s_add_u32 m0, m0, 8192')
            A('s_add_u32 s17, s17, 8192')
    A(f'''
    s_lshl_b32 s35, s38, 2
    s_add_u32 s35, s35, {s(sW)}
    s_add_u32 s35, s35, 448
    s_lshl_b32 s35, s35, 7
    s_add_u32 s35, s35, {WS_FLAGS}
    v_min_u32 {v(vFL)}, 6, {v(vL)}
    v_lshlrev_b32 {v(vFL)}, 9, {v(vFL)}
    v_add_u32 {v(vFL)}, s35, {v(vFL)}
    s_lshl_b32 s39, {s(sS)}, 9
    s_add_u32 s39, s39, s35
    ''')
    NR = 6
    AHEAD = 4
    rt = {}

    def rd(n):
        tile, ks = divmod(n, 28)
        nt = tile & 1

        def f():
            A(f'ds_read_b128 {v(RING + 4 * (n % NR), 4)}, {v(vL16)} offset:{1024 * (ks + 36 * nt)}')
            rt[n] = A.ltag()
        return f

    def lw(n):
        return lambda: A.wait(lt=rt[n])

    def vw(tagf):
        return lambda: A.wait(vt=tagf())

    def gelu_scalar(acc, nt, own):
        o = []
        G_ = 4
        for g0 in range(0, 16, G_):
            js = range(g0, g0 + G_)
            y = lambda j: v(T2 + (j % 8))
            x = lambda j: v(acc + j)
            o += [f'v_mul_f32 {y(j)}, {x(j)}, {x(j)}' for j in js]
            o += [f'v_fma_f32 {y(j)}, {y(j)}, {v(SB + nt)}, {v(SA + nt)}' for j in js]
            o += [f'v_mul_f32 {y(j)}, {y(j)}, {x(j)}' for j in js]
            o += [f'v_exp_f32 {y(j)}, {y(j)}' for j in js]
            o += [f'v_add_f32 {y(j)}, 1.0, {y(j)}' for j in js]
            o += [f'v_rcp_f32 {y(j)}, {y(j)}' for j in js]
            o += [f'v_mul_f32 {y(j)}, {y(j)}, {x(j)}' for j in js]
            o += [f'v_cvt_pk_bf16_f32 {v(own + j // 2)}, {y(j)}, {y(j + 1)}' for j in js if j % 2 == 0]
        return o

    tags = {}

    def t_store(tile):
        ft, nt = tile >> 1, tile & 1

        def f(kk):
            def g():
                A(f'buffer_store_dwordx4 {v(OWN + 8 * tile + 4 * kk, 4)}, {v(vTb if ft else vT)}, {SRD}, {s(sM)} offen offset:{2048 * nt + 1024 * kk} sc1')
                tags[('st', tile)] = A.vtag()
            return g
        return f(0), f(1)

    def t_flag(tile):
        def f():
            A.wait(vt=tags[('st', tile)])
            signal('s39', tile + 1)
        f.cost = 20
        return f

    def poll_issue(c):
        def f():
            A(f'buffer_load_dword {v(vF)}, {v(vFL)}, {SRD}, 0 offen sc1')
            tags[('pl', c)] = A.vtag()
        return f

    def poll_check(c):
        def f():
            l = A.label('K2_P')
            A.wait(vt=tags[('pl', c)])
            A(f'v_cmp_gt_u32 vcc, {c + 1}, {v(vF)}')
            A(f's_cbranch_vccnz {l}s')
            A(f'{l}r:')
            tail.append(f'''
            {l}s:
            buffer_load_dword {v(vF)}, {v(vFL)}, {SRD}, 0 offen sc1
            s_sub_u32 s40, s40, 1
            s_cselect_b32 s41, 0, {c + 1}
            s_waitcnt vmcnt(0)
            v_cmp_gt_u32 vcc, s41, {v(vF)}
            s_cbranch_vccnz {l}s
            s_mov_b32 s40, 0x100000
            s_branch {l}r
            ''')
        f.cost = 12
        return f

    TB = [[a(112 + 4 * i, 4) for i in range(12)],
          [a(160 + 4 * i, 4) for i in range(4)] + [a(240 + 4 * i, 4) for i in range(4)] + [v(RING + 4 * i, 4) for i in range(4)]]

    def t_load(c, i):
        ft, nt = c >> 1, c & 1
        q, kk = 1 + (i >> 1), i & 1

        def f():
            A(f'buffer_load_dwordx4 {TB[c & 1][i]}, {v(vTb if ft else vT)}, {SRD}, {s(sM + q)} offen offset:{2048 * nt + 1024 * kk} sc1')
            tags[('tl', c, i)] = A.vtag()
        return f

    SP = OWN
    st_rd = [f'ds_read_b128 {v(SP + 4 * m, 4)}, {v(vL16)} offset:{1024 * (28 + m)}' for m in range(7)]
    st = []
    for e in range(2):
        idx = [SP + 2 * j + e for j in range(14)]
        while len(idx) > 1:
            nxt = []
            for j in range(0, len(idx) - 1, 2):
                st.append((len(idx), f'v_add_f32 {v(idx[j])}, {v(idx[j])}, {v(idx[j + 1])}'))
                nxt.append(idx[j])
            if len(idx) & 1:
                nxt.append(idx[-1])
            idx = nxt
    st = [x[1] for x in sorted(st, key=lambda z: -z[0])]
    m_, v_ = SP, SP + 1
    st += [f'v_mul_f32 {v(m_)}, {f2u(-1.0 / 448)}, {v(m_)}',
           f'v_mul_f32 {v(v_)}, {f2u(1.0 / 448)}, {v(v_)}',
           f'v_cvt_pk_bf16_f32 {v(BX + 1)}, {v(m_)}, 0',
           f'v_fma_f32 {v(v_)}, -{v(m_)}, {v(m_)}, {v(v_)}',
           f'v_lshlrev_b32 {v(TMP)}, 16, {v(BX + 1)}',
           f'v_max_f32 {v(v_)}, 0, {v(v_)}',
           f'v_sub_f32 {v(TMP)}, {v(m_)}, {v(TMP)}',
           f'v_add_f32 {v(v_)}, {f2u(EPS)}, {v(v_)}',
           f'v_cvt_pk_bf16_f32 {v(BX)}, {v(m_)}, {v(TMP)}',
           f'v_rsq_f32 {v(SR)}, {v(v_)}',
           f'v_mov_b32 {v(BX + 5)}, {v(BX + 1)}',
           f'v_mov_b32 {v(BX + 4)}, {v(BX)}',
           f'v_mov_b32 {v(SR + 1)}, {v(SR)}',
           f'v_permlane32_swap_b32 {v(BX + 1)}, {v(BX + 5)}',
           f'v_permlane32_swap_b32 {v(BX)}, {v(BX + 4)}',
           f'v_permlane32_swap_b32 {v(SR)}, {v(SR + 1)}']
    for nt in range(2):
        st += [f'v_mul_f32 {v(SA + nt)}, {f2u(GC1)}, {v(SR + nt)}',
               f'v_mul_f32 {v(SB + nt)}, {v(SR + nt)}, {v(SR + nt)}',
               f'v_mul_f32 {v(SB + nt)}, {v(SB + nt)}, {v(SA + nt)}',
               f'v_mul_f32 {v(SB + nt)}, {f2u(0.044715)}, {v(SB + nt)}']

    A.wait(vt=tg3[0])
    A('s_barrier')
    for n in range(AHEAD):
        rd(n)()
    A.wait(lt=rt[1])
    for tile in range(4):
        mt, nt = tile >> 1, tile & 1
        acc = ACC[tile & 1]
        mf = [f'{MF} {v(acc, 16)}, {a(112 * mt + 4 * ks, 4)}, {v(RING + 4 * ((28 * tile + ks) % NR), 4)}, {v(acc, 16) if ks else 0}' for ks in range(28)]
        mf.append(f'{MF} {v(acc, 16)}, {v(AX + 4 * mt, 4)}, {v(BX + 4 * nt, 4)}, {v(acc, 16)}')
        fx = {i: [] for i in range(29)}
        if tile == 0:
            fx[3] += [vw(lambda: tg3[2]), 's_barrier']
            fx[13] += [vw(lambda: tg3[4]), 's_barrier']
            fx[26] += [vw(lambda: tg3[7]), 's_barrier']
        for ks in range(28):
            n = 28 * tile + ks
            if n + AHEAD < 112:
                fx[ks].append(rd(n + AHEAD))
            if ks % 2 == 1 and n + 2 < 112:
                fx[ks].append(lw(n + 2))
        if tile == 0:
            for i in range(7):
                fx[14 + i // 4].append(st_rd[i])
            fx[15].append(lambda: rt.__setitem__('st', A.ltag()))
            fx[15][-1].cost = 0
            fx[17].append(lw('st'))
            for i in range(12):
                fx[i].append(w4_load(0, 14 + i))
            weave(A, mf, fx, st, 17, 28)
            stamp()
            continue
        s0, s1 = t_store(tile - 1)
        ge = gelu_scalar(ACC[(tile - 1) & 1], (tile - 1) & 1, OWN + 8 * (tile - 1))
        fill = ge[:len(ge) // 2] + [s0] + ge[len(ge) // 2:] + [s1]
        if tile == 1:
            fx[0].append(w4_load(0, 26))
            fx[2].append(w4_load(0, 27))
        if tile >= 2:
            fx[16].append(t_flag(tile - 2))
            for i in range(14):
                fx[2 * i if tile == 2 else i].append(w4_load(1, 14 * (tile - 2) + i))
        if tile == 3:
            fx[14].append(lambda: tags.__setitem__('w4', A.vtag()))
            fx[14][-1].cost = 0
            fx[8].append(poll_issue(0))
            fx[20].append(poll_check(0))
            for i in range(12):
                fx[20 + (i + 1) // 2].append(t_load(0, i))
        weave(A, mf, fx, fill, 2, 29)
    stamp()
    OA = lambda jt, nt: a(176 + 32 * nt + 16 * jt, 16)
    started = set()

    def g4(c, q, kk, jt, bfrag):
        ft, nt = c >> 1, c & 1
        p = 4 * q + 2 * kk + jt
        wf = v(W4 + 4 * p, 4) if ft == 0 else a(4 * p, 4)
        cc = OA(jt, nt) if (jt, nt) in started else 0
        started.add((jt, nt))
        return f'{MF} {OA(jt, nt)}, {wf}, {bfrag}, {cc}'
    own = lambda c: [g4(c, 0, kk, jt, v(OWN + 8 * c + 4 * kk, 4)) for kk in range(2) for jt in range(2)]
    A.wait(vt=tags['w4'])
    mf = own(0) + own(1) + own(2)
    s0, s1 = t_store(3)
    ge = gelu_scalar(ACC[1], 1, OWN + 24)
    fill = ge[:len(ge) // 2] + [s0] + ge[len(ge) // 2:] + [s1]
    fx = {i: [] for i in range(12)}
    fx[0].append(poll_issue(1))
    fx[8].append(t_flag(2))
    weave(A, mf, fx, fill, 1, 12)
    poll_check(1)()
    for c in range(4):
        mf = []
        fx = {}
        if c == 0:
            mf += own(3)
        b = len(mf)
        for i in range(12):
            for jt in range(2):
                mf.append(g4(c, 1 + (i >> 1), i & 1, jt, TB[c & 1][i]))
        fx = {i: [] for i in range(len(mf))}
        for i in range(0, 12, 2):
            w_ = vw(lambda i=i, c=c: tags[('tl', c, i + 1)])
            if b + 2 * i - 1 >= 0:
                fx[b + 2 * i - 1].append(w_)
            else:
                w_()
        if c == 0:
            for i in range(12):
                fx[i].insert(0, t_load(1, i))
            fx[13].append(t_flag(3))
            fx[14].append(poll_issue(2))
            fx[len(mf) - 1].append(poll_check(2))
        elif c == 1:
            for i in range(12):
                fx[i].insert(0, t_load(2, i))
            fx[12].append(poll_issue(3))
            fx[len(mf) - 1].append(poll_check(3))
        elif c == 2:
            for i in range(12):
                fx[i].insert(0, t_load(3, i))
            fx[14].append(f's_lshl_b32 s3, {s(sW)}, 12')
            fx[14].append(f's_add_u32 s3, s3, {L_A}')
            fx[15].append(f'v_add_u32 {v(vD)}, s3, {v(vL16)}')
            fx[16].append(f's_lshl_b32 s3, {s(sW)}, 14')
            fx[16].append(f'v_add_u32 {v(vB)}, s3, {v(vL16)}')
            fx[18].append('s_barrier')
        else:
            for i in range(8):
                fx[6 + 2 * i].append(f'ds_write_b128 {v(vD)}, {a(176 + 4 * i, 4)} offset:{16384 * (i >> 2) + 1024 * (i & 3)}')
        weave(A, mf, fx, [])
    stamp()
    R0 = 128
    for q in range(4):
        A(f'ds_read_b128 {v(HF + 4 * q, 4)}, {v(vRW)} offset:{1024 * q}')
    A(f's_cmp_eq_u32 {s(sNT)}, 0')
    A('s_cselect_b64 vcc, -1, 0')
    A(f'v_cndmask_b32 {v(SR)}, {v(SR + 1)}, {v(SR)}, vcc')
    for i in range(8, 16):
        A(f'ds_write_b128 {v(vD)}, {a(176 + 4 * i, 4)} offset:{16384 * (i >> 2) + 1024 * (i & 3)}')
    A('s_waitcnt lgkmcnt(0)')
    A('s_barrier')
    lt = []
    for q in range(4):
        for w_ in range(4):
            A(f'ds_read_b128 {v(R0 + 16 * q + 4 * w_, 4)}, {v(vB)} offset:{4096 * w_ + 1024 * q}')
        lt.append(A.ltag())
    for q in range(4):
        A.wait(lt=lt[q])
        r = R0 + 16 * q
        for e in range(2):
            A(f'v_pk_add_f32 {v(r + 2 * e, 2)}, {v(r + 2 * e, 2)}, {v(r + 4 + 2 * e, 2)}')
            A(f'v_pk_add_f32 {v(r + 8 + 2 * e, 2)}, {v(r + 8 + 2 * e, 2)}, {v(r + 12 + 2 * e, 2)}')
        for e in range(2):
            A(f'v_pk_add_f32 {v(r + 2 * e, 2)}, {v(r + 2 * e, 2)}, {v(r + 8 + 2 * e, 2)}')
        for e in range(2):
            A(f'v_pk_fma_f32 {v(r + 2 * e, 2)}, {v(r + 2 * e, 2)}, {v(SR, 2)}, {v(HF + 4 * q + 2 * e, 2)} op_sel_hi:[1,0,1]')
        for e in range(2):
            A(f'v_cvt_pk_bf16_f32 {v(GP + 2 * q + e)}, {v(r + 2 * e)}, {v(r + 2 * e + 1)}')
        if q & 1:
            g = GP + 2 * (q - 1)
            A(f'v_permlane32_swap_b32 {v(g)}, {v(g + 2)}')
            A(f'v_permlane32_swap_b32 {v(g + 1)}, {v(g + 3)}')
            A(f'global_store_dwordx4 {v(vO)}, {v(g, 4)}, s[4:5] offset:{16 * (q - 1)}')
    if ts:
        A('s_waitcnt vmcnt(0)')
        stamp()
        A('s_waitcnt lgkmcnt(0)')
        A(f's_lshl_b32 s3, s2, 2')
        A(f's_add_u32 s3, s3, {s(sW)}')
        A(f's_lshl_b32 s3, s3, 6')
        A(f's_add_u32 s3, s3, 0x80000')
        for i in range(nts[0]):
            A(f'v_mov_b32 v32, s{60 + 2 * i}')
            A(f'buffer_store_dword v32, off, {SRD}, s3 offset:{4 * i}')
    A('K2_END:')
    A('s_endpgm')
    for t in tail:
        A(t)
    return [('mixer_mlp_kernel', A, 512, 256, 224, K2_LDS)]
```

```python
import sys
from asmgen import kernel_text
AMP=20
def make(src, name, offA, offB):
    base=open(src).read(); lines=base.split('\n')
    body=f'''    s_cmp_ge_u32 s2, 1
    s_cbranch_scc1 DG_END
    s_load_dwordx2 s[4:5], s[0:1], 112
    s_memrealtime s[8:9]
    s_waitcnt lgkmcnt(0)
    s_mov_b32 s12, {offA}
    s_mov_b32 s13, {offB}
    s_load_dword s10, s[4:5], s12
    s_load_dword s11, s[4:5], s13
    s_waitcnt lgkmcnt(0)
    s_sub_u32 s10, s11, s10
    s_min_u32 s10, s10, 10000
    s_mul_i32 s10, s10, {AMP}
DG_L:
    s_memrealtime s[14:15]
    s_waitcnt lgkmcnt(0)
    s_sub_u32 s14, s14, s8
    s_cmp_lt_u32 s14, s10
    s_cbranch_scc1 DG_L
DG_END:
    s_endpgm'''
    out=[]; idx=max(i for i,l in enumerate(lines) if '@launch' in l)
    lines.insert(idx+1,'; @launch kernel=diag_kernel grid=(1,1,1) block=(64,1,1) lds=0')
    open(name,'w').write('\n'.join(lines)+'\n'+kernel_text('diag_kernel',body,8,8))
k1=lambda wg,w,i: 0x90000+(wg*4+w)*64+4*i
k2=lambda wg,w,i: 0x80000+(wg*4+w)*64+4*i
if __name__=='__main__':
    src=sys.argv[1]
    make(src,'d0.s',k1(100,0,0),k1(100,0,0))
    make(src,'d1.s',k1(100,0,0),k2(100,0,10))
    make(src,'d2.s',k1(100,0,0),k1(100,0,1))
    make(src,'d3.s',k1(100,0,0),k1(100,0,9))
    make(src,'d4.s',k2(100,0,0),k2(100,0,1))
    make(src,'d5.s',k1(5,0,0),k1(5,0,1))
```
